```python
import torch

def _softmax(x, axis=-1):
    return torch.softmax(x, dim=axis)
def _gelu(x):
    return torch.nn.functional.gelu(x, approximate="tanh")
def _silu(x):
    return torch.nn.functional.silu(x)
def _sigmoid(x):
    return torch.sigmoid(x)
def _layernorm(x, axis=-1, eps=1e-5):
    m = x.mean(dim=axis, keepdim=True)
    v = x.var(dim=axis, keepdim=True, unbiased=False)
    return (x - m) / torch.sqrt(v + eps)
def _scatter_add(tgt, idx, src, axis=0):
    return tgt.clone().index_add_(axis, idx, src)
def _segment_sum(src, seg, n):
    out = torch.zeros((n,) + src.shape[1:], dtype=src.dtype)
    return out.index_add_(0, seg, src)
def _pad(x, pw):
    flat = tuple(v for pair in reversed(pw) for v in pair)
    return torch.nn.functional.pad(x, flat)

kernel_name = 'sequential_preLN__sliding_block__glu_gated_bilinear__prompt'

def setup_inputs():

    _w = (lambda a: (lambda t: t.to(torch.bfloat16) if t.is_floating_point() else t)(torch.as_tensor(a)))
    def _A_setup():
        B, S, D = 1, 2048, 640
        return {
            "x": _w((lambda *s: torch.randn(*s, dtype=torch.bfloat16) * 0.05)(B, S, D)),
            "wqkv": _w((lambda *s: torch.randn(*s, dtype=torch.bfloat16) * 0.05)(D, 3 * D)),
            "wo": _w((lambda *s: torch.randn(*s, dtype=torch.bfloat16) * 0.05)(D, D)),
        }
    _A_in = _A_setup()

    def _B_setup():
        B, S, D, F = 1, 2048, 640, 1728
        return {
            "x": _w((lambda *s: torch.randn(*s, dtype=torch.bfloat16) * 0.05)(B, S, D)),
            "w_gate": _w((lambda *s: torch.randn(*s, dtype=torch.bfloat16) * 0.8)(D, F) * (D ** -0.5)),
            "w_up": _w((lambda *s: torch.randn(*s, dtype=torch.bfloat16) * 0.8)(D, F) * (D ** -0.5)),
            "w_down": _w((lambda *s: torch.randn(*s, dtype=torch.bfloat16) * 0.8)(F, D) * (F ** -0.5)),
        }
    _B_in = _B_setup()

    return {
        "A_x": _A_in["x"],
        "A_wqkv": _A_in["wqkv"],
        "A_wo": _A_in["wo"],
        "B_x": _B_in["x"],
        "B_w_gate": _B_in["w_gate"],
        "B_w_up": _B_in["w_up"],
        "B_w_down": _B_in["w_down"],
    }

def reference(A_x, A_wqkv, A_wo, B_x, B_w_gate, B_w_up, B_w_down):
    def _A_ref(x, wqkv, wo):
        B, S, D = x.shape
        H = 32; Dh = D // H; W = 256
        qkv = (lambda x, *d: x.permute(*d))((x @ wqkv).reshape(B, S, 3, H, Dh), 2, 0, 3, 1, 4)
        q, k, v = qkv[0], qkv[1], qkv[2]
        scores = torch.einsum("bhqd,bhkd->bhqk", q, k) * (Dh ** -0.5)
        idx = torch.arange(S)
        mask = (idx[:, None] - idx[None, :] >= 0) & (idx[:, None] - idx[None, :] < W)
        scores = torch.where(mask[None, None], scores, -1e9)
        p = _softmax(scores, axis=-1)
        o = torch.einsum("bhqk,bhkd->bhqd", p, v)
        return (lambda x, *d: x.permute(*d))(o, 0, 2, 1, 3).reshape(B, S, D) @ wo

    def _B_ref(x, w_gate, w_up, w_down):
        g = torch.einsum("bsd,df->bsf", x, w_gate)
        u = torch.einsum("bsd,df->bsf", x, w_up)
        h = g * u
        return torch.einsum("bsf,fd->bsd", h, w_down)

    x = A_x
    h = x + _A_ref(_layernorm(x, axis=-1), A_wqkv, A_wo)
    h2 = h + _B_ref(_layernorm(h, axis=-1), B_w_gate, B_w_up, B_w_down)
    return h2
```

```python
NAME = 'sequential_preLN__sliding_block__glu_gated_bilinear__prompt'

KARG = dict(x=0, wqkv=8, wo=16, bx=24, wg=32, wu=40, wd=48, out=56, dbg=64, ws=72)

class Asm:
    def __init__(self):
        self.lines = []
        self.uid = 0
    def __call__(self, s=''):
        for l in s.split('\n'):
            self.lines.append(l)
    def label(self, base):
        self.uid += 1
        return f'L{base}_{self.uid}'
    def text(self):
        return '\n'.join(self.lines) + '\n'

def header(launches, comment=''):
    s = []
    if comment:
        for l in comment.split('\n'):
            s.append('; ' + l)
    for k, g, b, lds in launches:
        s.append(f'; @launch kernel={k} grid=({g[0]},{g[1]},{g[2]}) block=({b[0]},{b[1]},{b[2]}) lds={lds}')
    s.append('.amdgcn_target "amdgcn-amd-amdhsa--gfx950"')
    s.append('.text')
    return '\n'.join(s) + '\n'

def kernel_begin(name):
    return f'.globl {name}\n.p2align 8\n.type {name},@function\n{name}:\n'

def descriptor(name, vgpr, sgpr=102, accum=None, wgy=False):
    if accum is None:
        accum = (vgpr + 3) // 4 * 4
    s = f'''.amdhsa_kernel {name}
  .amdhsa_next_free_vgpr {vgpr}
  .amdhsa_next_free_sgpr {sgpr}
  .amdhsa_accum_offset {accum}
  .amdhsa_group_segment_fixed_size 0
  .amdhsa_kernarg_size 80
  .amdhsa_user_sgpr_count 2
  .amdhsa_user_sgpr_kernarg_segment_ptr 1
  .amdhsa_system_sgpr_workgroup_id_x 1
'''
    if wgy:
        s += '  .amdhsa_system_sgpr_workgroup_id_y 1\n'
    s += '  .amdhsa_float_denorm_mode_32 3\n  .amdhsa_float_denorm_mode_16_64 3\n'
    s += '.end_amdhsa_kernel\n'
    return s

def rodata(descs):
    return '.section .rodata,"a"\n.p2align 6\n' + '\n.p2align 6\n'.join(descs)
```

```python
import re

def _split_ops(s):
    ops, depth, cur = [], 0, ''
    for ch in s:
        if ch == '[': depth += 1
        if ch == ']': depth -= 1
        if ch == ',' and depth == 0:
            ops.append(cur.strip()); cur = ''
        else:
            cur += ch
    if cur.strip(): ops.append(cur.strip())
    return ops

_REG = re.compile(r'^-?\|?(?:abs\()?([vsa])(?:(\d+)|\[(\d+):(\d+)\])\)?\|?$')
def regs_of(tok):
    tok = tok.strip()
    if tok in ('vcc',): return {('s', 106), ('s', 107)}
    if tok == 'vcc_lo': return {('s', 106)}
    if tok == 'vcc_hi': return {('s', 107)}
    if tok == 'exec': return {('x', 0)}
    if tok == 'm0': return {('m', 0)}
    m = _REG.match(tok)
    if not m: return set()
    k = m.group(1)
    if m.group(2) is not None: return {(k, int(m.group(2)))}
    return {(k, i) for i in range(int(m.group(3)), int(m.group(4)) + 1)}

TRANS = ('v_exp_f32', 'v_log_f32', 'v_rcp_f32', 'v_rsq_f32', 'v_sqrt_f32', 'v_sin_f32', 'v_cos_f32', 'v_rcp_iflag_f32')

class Ins:
    __slots__ = ('text', 'mn', 'kind', 'defs', 'uses', 'mf', 'states', 'label', 'target', 'dpp', 'stdata', 'ldsdma', 'srcc', 'ab')
    def __init__(self, text):
        self.text = text
        self.label = None; self.target = None
        self.defs = set(); self.uses = set(); self.mf = 0; self.states = 1
        self.dpp = False; self.stdata = set(); self.ldsdma = False; self.srcc = set(); self.ab = set()
        t = text.split(';')[0].split('//')[0].strip()
        if not t or t.startswith('.'):
            self.kind = 'none'; self.states = 0; self.mn = ''; return
        if t.endswith(':'):
            self.kind = 'label'; self.label = t[:-1]; self.states = 0; self.mn = ''; return
        parts = t.split(None, 1)
        mn = parts[0]; rest = parts[1] if len(parts) > 1 else ''
        for suf in ('_e32', '_e64', '_dpp', '_sdwa'):
            if mn.endswith(suf): mn = mn[:-len(suf)]
        self.mn = mn
        ops = _split_ops(rest)
        mods = ''
        if ops:
            last = ops[-1].split(None, 1)
            if len(last) > 1:
                ops[-1] = last[0]; mods = last[1]
        R = [regs_of(o) for o in ops]
        if mn.startswith('v_mfma'):
            self.kind = 'mfma'
            self.defs = R[0]; self.ab = R[1] | R[2]; self.srcc = R[3]; self.uses = self.ab | self.srcc
            self.mf = 8 if '32x32' in mn else 4
            if '4x4x4' in mn: self.mf = 2
        elif mn.startswith('v_'):
            self.kind = 'valu'
            if 'quad_perm' in mods or 'row_' in mods or 'wave_' in mods: self.dpp = True
            if mn.startswith('v_cmp'):
                self.defs = R[0]; self.uses = set().union(*R[1:])
            elif mn.startswith('v_permlane') and 'swap' in mn:
                self.defs = R[0] | R[1]; self.uses = R[0] | R[1]
            elif mn in ('v_fmac_f32', 'v_dot2c_f32_bf16', 'v_pk_fmac_f16', 'v_writelane_b32'):
                self.defs = R[0]; self.uses = set().union(*R)
            elif mn in ('v_add_co_u32', 'v_sub_co_u32', 'v_addc_co_u32', 'v_subb_co_u32', 'v_subrev_co_u32', 'v_mad_u64_u32', 'v_div_scale_f32'):
                self.defs = R[0] | R[1]; self.uses = set().union(*R[2:])
            else:
                self.defs = R[0]; self.uses = set().union(*R[1:]) if len(R) > 1 else set()
                if self.dpp: self.uses |= R[0]
        elif mn.startswith('ds_'):
            self.kind = 'ds'
            if mn.startswith('ds_read') or mn.startswith('ds_bpermute') or mn.startswith('ds_permute') or mn.startswith('ds_swizzle') or '_rtn' in mn:
                self.defs = R[0]; self.uses = set().union(*R[1:])
            else:
                self.uses = set().union(*R)
        elif mn.startswith('buffer_') or mn.startswith('global_'):
            self.kind = 'vmem'
            lds = 'lds' in mods.split() or '_lds_' in mn
            self.ldsdma = lds
            if mn in ('buffer_wbl2', 'buffer_inv'):
                pass
            elif lds:
                self.uses = set().union(*R) | {('m', 0)}
            elif '_load' in mn:
                self.defs = R[0]; self.uses = set().union(*R[1:])
            elif '_store' in mn:
                self.uses = set().union(*R)
                if 'x3' in mn or 'x4' in mn:
                    self.stdata = R[0] if mn.startswith('buffer_') else R[1]
            elif '_atomic' in mn:
                self.uses = set().union(*R)
                if 'sc0' in mods.split(): self.defs = R[0]
        elif mn.startswith('s_'):
            self.kind = 'salu'
            if mn == 's_nop':
                self.states = int(ops[0], 0) + 1
            elif mn in ('s_branch',) or mn.startswith('s_cbranch'):
                self.target = ops[0]
            elif mn.startswith('s_cmp') or mn in ('s_waitcnt', 's_barrier', 's_endpgm', 's_sleep', 's_setprio', 's_setpc_b64'):
                self.uses = set().union(*R) if R else set()
            else:
                self.defs = R[0] if R else set(); self.uses = set().union(*R[1:]) if len(R) > 1 else set()
        else:
            raise ValueError('unknown instruction: ' + text)

def vg(s): return {r for r in s if r[0] in 'va'}
def sg(s): return {r for r in s if r[0] == 's'}

def need(p, c):
    n = 0
    if p.kind == 'valu':
        pv = vg(p.defs); ps = sg(p.defs)
        if c.kind == 'mfma' and pv & c.uses: n = max(n, 2)
        if ps:
            if c.kind == 'vmem' and ps & c.uses: n = max(n, 5)
            if c.kind in ('valu', 'mfma') and ps & c.uses:
                n = max(n, 4 if c.mn in ('v_readlane_b32', 'v_writelane_b32', 'v_div_fmas_f32') else 2)
        if c.kind == 'valu':
            if c.mn in ('v_readfirstlane_b32', 'v_readlane_b32') and pv & c.uses: n = max(n, 1)
            if c.mn.startswith('v_permlane') and pv & c.uses: n = max(n, 2)
            if c.dpp and pv & c.uses: n = max(n, 2)
            if p.mn in TRANS and c.mn not in TRANS and pv & c.uses: n = max(n, 1)
        if p.mn in TRANS and c.kind in ('ds', 'vmem') and pv & c.uses: n = max(n, 1)
    if p.kind == 'mfma':
        d = p.defs
        raw = {2: 5, 4: 8, 8: 12, 16: 20}[p.mf]
        if c.kind == 'mfma':
            if d & c.ab: n = max(n, raw)
            if d & c.srcc:
                if d == c.srcc and p.mf == c.mf: n = max(n, 2 if p.mf == 2 else 0)
                else: n = max(n, {2: 4, 4: 6, 8: 10, 16: 18}[p.mf])
            if d & c.defs and not (d == c.srcc):
                n = max(n, raw)
        elif c.kind in ('valu', 'ds', 'vmem'):
            if d & (c.uses | c.defs): n = max(n, raw)
        if c.kind == 'valu' and p.srcc & c.defs:
            n = max(n, {2: 1, 4: 3, 8: 7, 16: 15}[p.mf])
    if p.kind == 'salu' and ('m', 0) in p.defs and c.kind == 'vmem' and c.ldsdma: n = max(n, 1)
    if p.stdata:
        if c.kind == 'valu' and p.stdata & c.defs: n = max(n, 2)
        elif c.kind in ('ds', 'vmem', 'mfma') and p.stdata & c.defs: n = max(n, 1)
    return n

WIN = 22
def _scan_pair(prev, nxt):
    tail = []
    acc = 0
    for p in reversed(prev):
        if p.states == 0: continue
        tail.append((p, acc)); acc += p.states
        if acc > WIN: break
    acc2 = 0
    for j, c in enumerate(nxt):
        if c.states == 0: continue
        worst = 0
        for p, d in tail:
            nd = need(p, c)
            if nd > d + acc2: worst = max(worst, nd - d - acc2)
        if worst: return j, worst
        acc2 += c.states
        if acc2 > WIN: break
    return None

def nop_lines(n):
    out = []
    while n > 0:
        k = min(n, 16)
        out.append(f'    s_nop {k-1}')
        n -= k
    return out

def fix_hazards(lines):
    ins = [Ins(l) for l in lines]
    total = 0
    out = []
    for c in ins:
        if c.states:
            worst = 0; acc = 0
            for p in reversed(out):
                if p.states == 0: continue
                nd = need(p, c)
                if nd > acc: worst = max(worst, nd - acc)
                acc += p.states
                if acc > WIN: break
                if p.mn in ('s_branch', 's_endpgm', 's_setpc_b64'): break
            if worst:
                for l in nop_lines(worst): out.append(Ins(l))
                total += worst
        out.append(c)
    changed = True
    while changed:
        changed = False
        pos = {i.label: k for k, i in enumerate(out) if i.label}
        for k, b in enumerate(out):
            if b.target and b.target in pos:
                t = pos[b.target]
                prev = out[max(0, k - 40):k + 1]
                for q in range(len(prev) - 2, -1, -1):
                    if prev[q].mn in ('s_branch', 's_endpgm', 's_setpc_b64'):
                        prev = prev[q + 1:]; break
                nxt = out[t + 1:t + 60]
                v = _scan_pair(prev, nxt)
                if v:
                    j, n = v
                    at = t + 1
                    out[at:at] = [Ins(l) for l in nop_lines(n)]
                    total += n
                    changed = True
                    break
    return [i.text for i in out], total

class E:
    def __init__(self):
        self.lines = []
        self.uid = 0
    def __call__(self, s=''):
        for l in s.split('\n'):
            l = l.rstrip()
            if l.strip(): self.lines.append(l if (l.startswith(' ') or l.strip().endswith(':') or l.strip().startswith('.')) else '    ' + l)
    def lab(self, base):
        self.uid += 1
        return f'L{base}_{self.uid}'
```

```python
import sys
from emit import E, fix_hazards
from asmlib import NAME, descriptor, rodata

C_QKV, C_ATT, C_WO, C_GU = 0x0000, 0x1000, 0x2000, 0x3000
C_AUX, C_REPD = 0x4000, 0x4100
CS_OFF   = 0x10000
STATS2   = 0x80000
WOP      = 0x100000
WDP      = 0x200000
QKVP     = 0x500000
OP       = 0xD00000
HP       = 0x1000000
HHP      = 0x1300000
STAMPS   = 0x2000000
WS_REC   = 0x2100000
PLANE    = 32768

SRD_X, SRD_WA, SRD_WB, SRD_WS, SRD_OUT, SRD_DBG = 4, 8, 12, 16, 20, 24
sG, sM, sWAVE = 28, 29, 30
P_X, P_WQKV, P_WO, P_WG, P_WU, P_WD, P_OUT, P_DBG, P_WS = 32, 34, 36, 40, 42, 44, 46, 48, 50
SPIN = 40000

def srd(n): return f's[{n}:{n+3}]'
def vr(a, n=1): return f'v{a}' if n == 1 else f'v[{a}:{a+n-1}]'

class Gen:
    def __init__(self, stop=99, stamps=False, opt=None):
        self.e = E()
        self.stop = stop
        self.stamps = stamps
        self.opt = opt or {}
        self.tail = []

    def mk_srd(self, n, ptr, nbytes):
        e = self.e
        e(f's_mov_b32 s{n}, s{ptr}')
        e(f's_and_b32 s{n+1}, s{ptr+1}, 0xffff')
        e(f's_mov_b32 s{n+2}, {nbytes}')
        e(f's_mov_b32 s{n+3}, 0x20000')

    LDS_STAMP = 162816
    def stamp(self, i):
        if self.stamps:
            e = self.e
            e('s_memrealtime s[74:75]')
            e(f's_lshl_b32 s73, s{sWAVE}, 7')
            e(f's_add_u32 s73, s73, {self.LDS_STAMP + 8*i}')
            e('s_waitcnt lgkmcnt(0)')
            e('v_mov_b32 v253, s73')
            e('v_mov_b32 v254, s74')
            e('v_mov_b32 v255, s75')
            e('ds_write_b64 v253, v[254:255]')
            e('s_waitcnt lgkmcnt(0)')

    def stamps_out(self):
        if not self.stamps: return
        e = self.e
        e('s_waitcnt vmcnt(0) lgkmcnt(0)')
        e('s_barrier')
        e(f's_lshl_b32 s52, s2, 10')
        e(f's_add_u32 s52, s52, {STAMPS}')
        e(f's_lshl_b32 s53, s{sWAVE}, 7')
        e('v_and_b32 v1, 15, v0')
        e('v_lshlrev_b32 v1, 3, v1')
        e('v_add_u32 v1, s53, v1')
        e(f'v_add_u32 v2, {self.LDS_STAMP}, v1')
        e('ds_read_b64 v[4:5], v2')
        e('s_waitcnt lgkmcnt(0)')
        e(f'buffer_store_dwordx2 v[4:5], v1, {srd(SRD_WS)}, s52 offen')
        e('s_waitcnt vmcnt(0)')

    def signal(self, soff_reg, tmpv=1):
        e = self.e
        e(f'v_mov_b32 v{tmpv}, 1')
        e('s_mov_b64 exec, 1')
        e(f'buffer_atomic_add v{tmpv}, off, {srd(SRD_WS)}, s{soff_reg} sc1')
        e('s_mov_b64 exec, -1')

    def poll(self, voff, vtarget, srdn=SRD_WS, tmpv=1, cnt=52):
        e = self.e
        L = e.lab('poll'); D = e.lab('polld')
        e(f's_mov_b32 s{cnt}, {SPIN}')
        e(f'{L}:')
        e(f'buffer_load_dword v{tmpv}, v{voff}, {srd(srdn)}, 0 offen sc1')
        e('s_waitcnt vmcnt(0)')
        e(f'v_cmp_le_u32 vcc, v{vtarget}, v{tmpv}')
        e('s_cmp_eq_u64 vcc, -1')
        e(f's_cbranch_scc1 {D}')
        e('s_sleep 1')
        e(f's_sub_u32 s{cnt}, s{cnt}, 1')
        e(f's_cmp_lg_u32 s{cnt}, 0')
        e(f's_cbranch_scc1 {L}')
        e(f'{D}:')

    def finish(self):
        self.e('s_branch Lfin')

    def entry(self):
        e = self.e
        e('s_cmp_ge_u32 s2, 256')
        e('s_cbranch_scc1 Lend')
        e('s_load_dwordx16 s[32:47], s[0:1], 0')
        e('s_load_dwordx4 s[48:51], s[0:1], 64')
        e('v_lshrrev_b32 v1, 6, v0')
        e('v_and_b32 v0, 63, v0')
        e(f'v_readfirstlane_b32 s{sWAVE}, v1')
        self.stamp(0)
        e('s_and_b32 s3, s2, 7')
        e('s_lshr_b32 s31, s2, 3')
        e('s_lshr_b32 s52, s3, 1')
        e('s_lshl_b32 s52, s52, 2')
        e('s_lshr_b32 s53, s31, 3')
        e(f's_add_u32 s{sG}, s52, s53')
        e('s_and_b32 s52, s31, 7')
        e('s_lshl_b32 s52, s52, 1')
        e('s_and_b32 s53, s3, 1')
        e(f's_add_u32 s{sM}, s52, s53')
        e('s_waitcnt lgkmcnt(0)')
        self.mk_srd(SRD_X, P_X, 2048 * 1280)
        self.mk_srd(SRD_WA, P_WQKV, 640 * 3840)
        self.mk_srd(SRD_WS, P_WS, WS_REC)
        self.mk_srd(SRD_DBG, P_DBG, 256)
        self.mk_srd(SRD_OUT, P_OUT, 2048 * 1280)

    def init_counters(self):
        e = self.e
        L = e.lab('noinit')
        e(f's_cmp_lg_u32 s{sM}, 0')
        e(f's_cbranch_scc1 {L}')
        e(f's_cmp_lg_u32 s{sWAVE}, 0')
        e(f's_cbranch_scc1 {L}')
        e('v_lshlrev_b32 v1, 12, v0')
        e(f's_lshl_b32 s52, s{sG}, 8')
        e('v_add_u32 v1, s52, v1')
        e('v_mov_b32 v2, 0')
        e('s_mov_b64 exec, 0xf')
        e(f'buffer_store_dword v2, v1, {srd(SRD_WS)}, 0 offen sc1')
        L2 = e.lab('noaux')
        e(f's_cmp_lg_u32 s{sG}, 0')
        e(f's_cbranch_scc1 {L2}')
        e('s_mov_b64 exec, 3')
        e('v_lshlrev_b32 v1, 8, v0')
        e(f'v_add_u32 v1, {C_AUX}, v1')
        e(f'buffer_store_dword v2, v1, {srd(SRD_WS)}, 0 offen sc1')
        e(f'{L2}:')
        e('s_waitcnt vmcnt(0)')
        e('s_mov_b64 exec, 1')
        e(f's_lshl_b32 s52, s{sG}, 2')
        e('v_mov_b32 v2, 1')
        e(f'buffer_store_dword v2, off, {srd(SRD_DBG)}, s52 sc1')
        e('s_mov_b64 exec, -1')
        e(f'{L}:')

    def check_init(self):
        e = self.e
        e('v_and_b32 v2, 15, v0')
        e('v_lshlrev_b32 v2, 2, v2')
        e('v_mov_b32 v3, 1')
        self.poll(2, 3, SRD_DBG)

    LDS_ST1 = 131072
    LDS_CS1 = 131072 + 1024

    def p1_loader(self):
        e = self.e
        sJ = 31
        e(f's_sub_u32 s{sJ}, s{sWAVE}, 4')
        e('v_lshrrev_b32 v1, 3, v0')
        e('v_lshrrev_b32 v2, 4, v0')
        e('v_and_b32 v3, 7, v0')
        e(f's_lshl_b32 s52, s{sJ}, 5')
        e('v_add_u32 v4, s52, v1')
        e('s_movk_i32 s53, 1280')
        e('v_mul_lo_u32 v4, v4, s53')
        for i in range(4):
            e(f'v_add_u32 v5, {4*i}, v2')
            e('v_and_b32 v5, 7, v5')
            e('v_xor_b32 v5, v5, v3')
            e(f'v_lshl_add_u32 v{10+i}, v5, 4, v4')
            if i: e(f'v_add_u32 v{10+i}, {i*(8*1280-1024)}, v{10+i}')
        e(f's_lshl_b32 s52, s{sJ}, 4')
        e('v_add_u32 v4, s52, v2')
        e('s_movk_i32 s53, 3840')
        e('v_mul_lo_u32 v4, v4, s53')
        e('v_and_b32 v5, 15, v0')
        e('v_lshlrev_b32 v6, 2, v2')
        e('v_xor_b32 v5, v5, v6')
        e('v_lshl_add_u32 v14, v5, 4, v4')
        for i in range(1, 4):
            e(f'v_add_u32 v{14+i}, {i*(4*3840-1024)}, v14')
        sX, sW, sL, sS, sRD = 54, 55, 56, 57, 58
        e(f's_mul_i32 s{sX}, s{sG}, {128*1280}')
        e(f's_lshl_b32 s{sW}, s{sM}, 8')
        e(f's_lshl_b32 s{sL}, s{sJ}, 12')
        def issue():
            e(f's_mov_b32 m0, s{sL}')
            for i in range(4):
                e(f'buffer_load_dwordx4 v{10+i}, {srd(SRD_X)}, s{sX} offen offset:{i*1024} lds')
            e(f's_add_u32 m0, s{sL}, 16384')
            for i in range(4):
                e(f'buffer_load_dwordx4 v{14+i}, {srd(SRD_WA)}, s{sW} offen offset:{i*1024} lds')
            e(f's_add_u32 s{sX}, s{sX}, 128')
            e(f's_add_u32 s{sW}, s{sW}, {64*3840}')
            e(f's_add_u32 s{sL}, s{sL}, 32768')
            e(f's_and_b32 s{sL}, s{sL}, 0x1ffff')
        for s in range(3): issue()
        self.stamp(1)
        for r in range(20, 36): e(f'v_mov_b32 v{r}, 0')
        e('v_lshlrev_b32 v19, 4, v0')
        e(f's_lshl_b32 s{sRD}, s{sJ}, 12')
        e(f's_mov_b32 s{sS}, 0')
        Lp = e.lab('p1l'); L8 = e.lab('w8'); L0 = e.lab('w0'); Lw = e.lab('wd'); Lni = e.lab('noiss')
        e(f'{Lp}:')
        e(f's_cmp_lt_u32 s{sS}, 8')
        e(f's_cbranch_scc0 {L8}')
        e('s_waitcnt vmcnt(16)')
        e(f's_branch {Lw}')
        e(f'{L8}:')
        e(f's_cmp_eq_u32 s{sS}, 8')
        e(f's_cbranch_scc0 {L0}')
        e('s_waitcnt vmcnt(8)')
        e(f's_branch {Lw}')
        e(f'{L0}:')
        e('s_waitcnt vmcnt(0)')
        e(f'{Lw}:')
        e('s_barrier')
        e(f's_cmp_lt_u32 s{sS}, 7')
        e(f's_cbranch_scc0 {Lni}')
        issue()
        e(f'{Lni}:')
        e(f'v_add_u32 v18, s{sRD}, v19')
        for i in range(4):
            e(f'ds_read_b128 v[{40+4*i}:{43+4*i}], v18 offset:{i*1024}')
        e(f's_add_u32 s{sRD}, s{sRD}, 32768')
        e(f's_and_b32 s{sRD}, s{sRD}, 0x1ffff')
        for i in range(4):
            e(f's_waitcnt lgkmcnt({3-i})')
            for d in range(4):
                src = 40 + 4*i + d
                t = 56 + 2*(d & 1)
                e(f'v_lshlrev_b32 v{t}, 16, v{src}')
                e(f'v_and_b32 v{t+1}, 0xffff0000, v{src}')
                e(f'v_pk_add_f32 v[{20+2*i}:{21+2*i}], v[{20+2*i}:{21+2*i}], v[{t}:{t+1}]')
                e(f'v_pk_fma_f32 v[{28+2*i}:{29+2*i}], v[{t}:{t+1}], v[{t}:{t+1}], v[{28+2*i}:{29+2*i}]')
        e(f's_add_u32 s{sS}, s{sS}, 1')
        e(f's_cmp_lt_u32 s{sS}, 10')
        e(f's_cbranch_scc1 {Lp}')
        self.stamp(2)
        e('s_mov_b32 s52, 0x3acccccd')
        e('s_mov_b32 s53, 0x3727c5ac')
        for i in range(4):
            s_, q_ = 20 + 2*i, 28 + 2*i
            e(f'v_add_f32 v{s_}, v{s_}, v{s_+1}')
            e(f'v_add_f32 v{q_}, v{q_}, v{q_+1}')
        for ctrl in ('quad_perm:[1,0,3,2]', 'quad_perm:[2,3,0,1]', 'row_half_mirror'):
            for i in range(4):
                for r in (20 + 2*i, 28 + 2*i):
                    e(f'v_add_f32_dpp v{r}, v{r}, v{r} {ctrl} row_mask:0xf bank_mask:0xf')
        e('v_lshrrev_b32 v1, 3, v0')
        e(f's_lshl_b32 s54, s{sJ}, 5')
        e('v_add_u32 v1, s54, v1')
        e('v_lshlrev_b32 v1, 3, v1')
        e(f'v_add_u32 v1, {self.LDS_ST1}, v1')
        for i in range(4):
            s_, q_ = 20 + 2*i, 28 + 2*i
            e(f'v_mul_f32 v{s_}, s52, v{s_}')
            e(f'v_mul_f32 v{q_}, s52, v{q_}')
            e(f'v_fma_f32 v{q_}, -v{s_}, v{s_}, v{q_}')
            e(f'v_max_f32 v{q_}, 0, v{q_}')
            e(f'v_add_f32 v{q_}, s53, v{q_}')
            e(f'v_rsq_f32 v{s_+1}, v{q_}')
            e(f'v_sub_f32 v{s_}, 0, v{s_}')
            e(f'ds_write_b64 v1, v[{s_}:{s_+1}] offset:{64*i}')
        e('s_waitcnt lgkmcnt(0)')
        e('s_barrier')
        L = e.lab('noini')
        e(f's_cmp_lg_u32 s{sWAVE}, 4')
        e(f's_cbranch_scc1 {L}')
        self.check_init()
        e(f'{L}:')
        e('s_barrier')

    def p1_consumer(self):
        e = self.e
        ACC, CSA, SEL = 64, 60, 56
        FX = [128, 144]
        AX, AW = 40, 44
        sWT, sWF = 54, 55
        e(f's_and_b32 s{sWT}, s{sWAVE}, 1')
        e(f's_lshr_b32 s{sWF}, s{sWAVE}, 1')
        e('v_and_b32 v1, 31, v0')
        e(f's_lshl_b32 s52, s{sWT}, 6')
        e('v_add_u32 v2, s52, v1')
        e('v_lshlrev_b32 v2, 7, v2')
        e('v_bfe_u32 v3, v0, 1, 3')
        e('v_lshrrev_b32 v4, 5, v0')
        for kk in range(4):
            e(f'v_add_u32 v5, {2*kk}, v4')
            e('v_xor_b32 v5, v5, v3')
            e(f'v_lshl_add_u32 v{AX+kk}, v5, 4, v2')
        e('v_lshrrev_b32 v1, 4, v0')
        e('v_bfe_u32 v2, v0, 2, 2')
        e('v_and_b32 v3, 3, v0')
        e('v_lshrrev_b32 v4, 1, v1')
        e('v_lshl_add_u32 v4, v4, 3, v2')
        e('v_lshlrev_b32 v4, 8, v4')
        e('v_add_u32 v4, 16384, v4')
        e('v_and_b32 v5, 1, v3')
        e('v_lshl_add_u32 v4, v5, 3, v4')
        e('v_and_b32 v5, 1, v1')
        e('v_lshlrev_b32 v5, 1, v5')
        e('v_lshrrev_b32 v6, 1, v3')
        e('v_add_u32 v5, v5, v6')
        e(f's_lshl_b32 s52, s{sWF}, 3')
        e(f's_lshl_b32 s53, s{sWT}, 2')
        e('s_add_u32 s52, s52, s53')
        e('v_add_u32 v5, s52, v5')
        e('v_lshlrev_b32 v6, 2, v2')
        e('v_xor_b32 v5, v5, v6')
        e(f'v_lshl_add_u32 v{AW}, v5, 4, v4')
        e(f'v_xor_b32 v{AW+1}, 64, v{AW}')
        e('v_and_b32 v5, 15, v0')
        e('v_and_b32 v6, 1, v1')
        e('v_cmp_eq_u32 vcc, v5, v6')
        e('v_mov_b32 v7, 0x3f803f80')
        e(f'v_cndmask_b32 v{SEL}, 0, v7, vcc')
        for r in range(1, 4): e(f'v_mov_b32 v{SEL+r}, v{SEL}')
        for r in range(ACC, ACC + 64): e(f'v_mov_b32 v{r}, 0')
        for r in range(CSA, CSA + 4): e(f'v_mov_b32 v{r}, 0')
        def reads(par, kk, st):
            f = FX[st]
            out = []
            for ft in range(2):
                for h in range(2):
                    out.append(f'ds_read_b64_tr_b16 v[{f+8+4*ft+2*h}:{f+9+4*ft+2*h}], v{AW+ft} offset:{par*32768 + kk*4096 + h*1024}')
            for tt in range(2):
                out.append(f'ds_read_b128 v[{f+4*tt}:{f+4*tt+3}], v{AX+kk} offset:{par*32768 + tt*4096}')
            return out
        def mfmas(st):
            f = FX[st]
            out = []
            for ft in range(2):
                for tt in range(2):
                    a = ACC + 32*ft + 16*tt
                    out.append(f'v_mfma_f32_32x32x16_bf16 v[{a}:{a+15}], v[{f+8+4*ft}:{f+11+4*ft}], v[{f+4*tt}:{f+4*tt+3}], v[{a}:{a+15}]')
            out.append(f'v_mfma_f32_16x16x32_bf16 v[{CSA}:{CSA+3}], v[{f+8}:{f+11}], v[{SEL}:{SEL+3}], v[{CSA}:{CSA+3}]')
            return out
        sIT = 56
        e(f's_mov_b32 s{sIT}, 0')
        self.stamp(1)
        e('s_barrier')
        for r in reads(0, 0, 0): e(r)
        Lp = e.lab('p1c')
        e(f'{Lp}:')
        st = 0
        for par in range(2):
            for kk in range(4):
                e('s_waitcnt lgkmcnt(0)')
                if kk == 3:
                    if par == 1:
                        Ls = e.lab('nb')
                        for r in list(range(AX, AX + 4)) + [AW, AW + 1]:
                            e(f'v_xor_b32 v{r}, 0x10000, v{r}')
                        e(f's_cmp_eq_u32 s{sIT}, 4')
                        e(f's_cbranch_scc1 {Ls}')
                        e('s_barrier')
                        e(f'{Ls}:')
                    else:
                        e('s_barrier')
                    rd = reads(par ^ 1, 0, st ^ 1)
                else:
                    rd = reads(par, kk + 1, st ^ 1)
                mf = mfmas(st)
                e(mf[0]); e(rd[0]); e(rd[1]); e(rd[2])
                e(mf[1]); e(rd[3]); e(rd[4]); e(rd[5])
                e(mf[2]); e(mf[3]); e(mf[4])
                st ^= 1
        e(f's_add_u32 s{sIT}, s{sIT}, 1')
        e(f's_cmp_lt_u32 s{sIT}, 5')
        e(f's_cbranch_scc1 {Lp}')
        e('s_waitcnt lgkmcnt(0)')
        self.stamp(2)
        e('v_and_b32 v1, 15, v0')
        e('v_lshrrev_b32 v2, 4, v0')
        e('v_lshlrev_b32 v2, 4, v2')
        e('v_lshl_add_u32 v2, v1, 6, v2')
        e(f's_lshl_b32 s52, s{sWF}, 1')
        e(f's_add_u32 s52, s52, s{sWT}')
        e('s_lshl_b32 s52, s52, 7')
        e(f's_add_u32 s52, s52, {self.LDS_CS1}')
        e('v_add_u32 v2, s52, v2')
        e('v_cmp_gt_u32 vcc, 2, v1')
        e('s_and_saveexec_b64 s[58:59], vcc')
        e(f'ds_write_b128 v2, v[{CSA}:{CSA+3}]')
        e('s_mov_b64 exec, s[58:59]')
        e('s_waitcnt lgkmcnt(0)')
        e('s_barrier')
        e('v_lshrrev_b32 v1, 5, v0')
        e('v_lshlrev_b32 v2, 4, v1')
        e(f's_lshl_b32 s52, s{sWF}, 8')
        e(f's_add_u32 s52, s52, {self.LDS_CS1}')
        e(f's_lshl_b32 s53, s{sWT}, 7')
        e('s_add_u32 s53, s53, s52')
        e('v_add_u32 v3, s53, v2')
        e('v_xor_b32 v4, 128, v3')
        for gq in range(4):
            e(f'ds_read_b128 v[{128+4*gq}:{131+4*gq}], v3 offset:{32*gq}')
        for gq in range(4):
            e(f'ds_read_b128 v[{144+4*gq}:{147+4*gq}], v4 offset:{32*gq}')
        e('v_and_b32 v5, 31, v0')
        e(f's_lshl_b32 s52, s{sWT}, 6')
        e('v_add_u32 v6, s52, v5')
        e('v_lshlrev_b32 v6, 3, v6')
        e(f'v_add_u32 v6, {self.LDS_ST1}, v6')
        e('ds_read_b64 v[160:161], v6')
        e('ds_read_b64 v[162:163], v6 offset:256')
        e('v_lshlrev_b32 v7, 15, v1')
        e('v_lshl_add_u32 v7, v5, 4, v7')
        e('s_mov_b32 s52, 0x3ea52b87')
        e(f's_cmp_lt_u32 s{sM}, 5')
        e('s_cselect_b32 s52, s52, 1.0')
        e(f's_lshl_b32 s53, s{sM}, 4')
        e(f's_lshl_b32 s57, s{sWF}, 3')
        e('s_add_u32 s53, s53, s57')
        e(f's_lshl_b32 s57, s{sWT}, 2')
        e('s_add_u32 s58, s53, s57')
        e('s_xor_b32 s57, s57, 4')
        e('s_add_u32 s59, s53, s57')
        e('s_lshl_b32 s58, s58, 15')
        e('s_lshl_b32 s59, s59, 15')
        e(f's_lshl_b32 s53, s{sG}, 7')
        e(f's_lshl_b32 s57, s{sWT}, 6')
        e('s_add_u32 s53, s53, s57')
        e('s_lshl_b32 s53, s53, 4')
        e(f's_add_u32 s53, s53, {QKVP}')
        e('s_add_u32 s58, s58, s53')
        e('s_add_u32 s59, s59, s53')
        e('s_waitcnt lgkmcnt(0)')
        e('v_mul_f32 v161, s52, v161')
        e('v_mul_f32 v163, s52, v163')
        nst = 0
        for ft in range(2):
            for tt in range(2):
                st_ = 160 + 2*tt
                for gp in range(2):
                    o = 164 + 4*(nst & 3)
                    for h in range(2):
                        gq = 2*gp + h
                        a = ACC + 32*ft + 16*tt + 4*gq
                        c = 128 + 16*ft + 4*gq
                        for p in range(2):
                            e(f'v_pk_fma_f32 v[{a+2*p}:{a+2*p+1}], v[{c+2*p}:{c+2*p+1}], v[{st_}:{st_+1}], v[{a+2*p}:{a+2*p+1}] op_sel_hi:[1,0,1]')
                        for p in range(2):
                            e(f'v_pk_mul_f32 v[{a+2*p}:{a+2*p+1}], v[{a+2*p}:{a+2*p+1}], v[{st_}:{st_+1}] op_sel:[0,1] op_sel_hi:[1,1]')
                        for p in range(2):
                            e(f'v_cvt_pk_bf16_f32 v{o+2*h+p}, v{a+2*p}, v{a+2*p+1}')
                    e(f'v_permlane32_swap_b32 v{o}, v{o+2}')
                    e(f'v_permlane32_swap_b32 v{o+1}, v{o+3}')
                    e(f's_add_u32 s57, s{58+ft}, {2*gp*PLANE + tt*512}')
                    e(f'buffer_store_dwordx4 v[{o}:{o+3}], v7, {srd(SRD_WS)}, s57 offen sc1')
                    nst += 1
        self.stamp(3)
        e('s_waitcnt vmcnt(0)')
        self.stamp(4)
        e('s_barrier')

    def p1_aux(self):
        e = self.e
        self.mk_srd(SRD_WA, P_WO, 640 * 1280)
        e(f's_lshr_b32 s54, s{sG}, 1')
        e(f's_and_b32 s55, s{sG}, 1')
        e('s_mul_i32 s55, s55, 320')
        e('s_mul_i32 s56, s54, 102400')
        e('s_mul_i32 s59, s55, 160')
        e('s_add_u32 s56, s56, s59')
        e(f's_add_u32 s56, s56, {WOP}')
        e(f's_lshl_b32 s60, s{sG}, 3')
        e(f's_add_u32 s60, s60, s{sWAVE}')
        Lnc = e.lab('nocs')
        e('s_cmp_lt_u32 s60, 108')
        e(f's_cbranch_scc0 {Lnc}')
        e('s_lshr_b32 s61, s60, 1')
        e('s_and_b32 s62, s60, 1')
        e('s_cmp_ge_u32 s61, 27')
        e('s_cselect_b32 s63, 1, 0')
        e(f's_cselect_b32 s64, s{P_WU}, s{P_WG}')
        e(f's_cselect_b32 s65, s{P_WU+1}, s{P_WG+1}')
        e('s_mul_i32 s66, s63, 27')
        e('s_sub_u32 s61, s61, s66')
        self.mk_srd(SRD_WB, 64, 640 * 3456)
        e('v_lshrrev_b32 v2, 3, v0')
        e('v_mul_u32_u24 v2, 3456, v2')
        e('v_and_b32 v3, 7, v0')
        e('v_lshl_add_u32 v2, v3, 4, v2')
        e(f's_mul_i32 s66, s62, {320*3456}')
        e('s_lshl_b32 s67, s61, 7')
        e('s_add_u32 s66, s66, s67')
        for i in range(40):
            e(f'buffer_load_dwordx4 v[{64+4*i}:{67+4*i}], v2, {srd(SRD_WB)}, s66 offen')
            if i < 39: e(f's_add_u32 s66, s66, {8*3456}')
        for r in range(56, 64): e(f'v_mov_b32 v{r}, 0')
        for i in range(40):
            if i % 4 == 0: e(f's_waitcnt vmcnt({36-i})')
            for d in range(4):
                src = 64 + 4*i + d
                t = 52 + 2*(d & 1)
                e(f'v_lshlrev_b32 v{t}, 16, v{src}')
                e(f'v_and_b32 v{t+1}, 0xffff0000, v{src}')
                e(f'v_pk_add_f32 v[{56+2*d}:{57+2*d}], v[{56+2*d}:{57+2*d}], v[{t}:{t+1}]')
        for r in range(56, 64):
            e(f'v_add_f32_dpp v{r}, v{r}, v{r} row_ror:8 row_mask:0xf bank_mask:0xf')
        for sw in ('v_permlane16_swap_b32', 'v_permlane32_swap_b32'):
            for r in range(56, 64): e(f'v_mov_b32 v{r+8}, v{r}')
            for r in range(56, 64): e(f'{sw} v{r}, v{r+8}')
            for r in range(56, 64): e(f'v_add_f32 v{r}, v{r}, v{r+8}')
        e('s_lshl_b32 s66, s62, 14')
        e('s_lshl_b32 s67, s63, 13')
        e('s_add_u32 s66, s66, s67')
        e('s_lshl_b32 s67, s61, 8')
        e('s_add_u32 s66, s66, s67')
        e(f's_add_u32 s66, s66, {CS_OFF}')
        e('v_lshlrev_b32 v2, 5, v0')
        e('s_mov_b64 exec, 0xff')
        e(f'buffer_store_dwordx4 v[56:59], v2, {srd(SRD_WS)}, s66 offen sc1')
        e(f'buffer_store_dwordx4 v[60:63], v2, {srd(SRD_WS)}, s66 offen offset:16 sc1')
        e('s_mov_b64 exec, -1')
        e('s_waitcnt vmcnt(0)')
        e(f'{Lnc}:')
        self.repack_simple(SRD_WA, 56, 54, 55, 3200)
        e('s_waitcnt vmcnt(0)')
        L = e.lab('noini')
        e(f's_cmp_lg_u32 s{sWAVE}, 4')
        e(f's_cbranch_scc1 {L}')
        self.check_init()
        e(f'{L}:')
        e('s_barrier')
        L = e.lab('nosig')
        e(f's_cmp_lg_u32 s{sWAVE}, 4')
        e(f's_cbranch_scc1 {L}')
        e(f's_mov_b32 s52, {C_AUX}')
        self.signal(52)
        e(f'{L}:')

    def repack_simple(self, srcsrd, dstoff_reg, fb_reg, prow0_reg, nchunks):
        e = self.e
        its = (nchunks + 511) // 512
        e(f's_lshl_b32 s52, s{sWAVE}, 6')
        e('v_add_u32 v1, s52, v0')
        e(f's_mul_i32 s53, s{fb_reg}, 160')
        e('s_mov_b32 s57, 52429')
        e(f's_mov_b32 s58, {nchunks}')
        for it in range(its):
            e(f'v_add_u32 v2, {512*it}, v1')
            e('v_mul_lo_u32 v3, v2, s57')
            e('v_lshrrev_b32 v3, 19, v3')
            e('v_mul_u32_u24 v4, 10, v3')
            e('v_sub_u32 v4, v2, v4')
            e(f'v_add_u32 v3, s{prow0_reg}, v3')
            e('v_and_b32 v5, 0xfffffff3, v3')
            e('v_and_b32 v6, 4, v3')
            e('v_lshl_or_b32 v5, v6, 1, v5')
            e('v_and_b32 v6, 8, v3')
            e('v_lshrrev_b32 v6, 1, v6')
            e('v_or_b32 v5, v5, v6')
            e('v_mul_u32_u24 v5, 1280, v5')
            e('v_lshl_add_u32 v5, v4, 4, v5')
            e('v_add_u32 v5, s53, v5')
            e(f'v_lshlrev_b32 v{10+it}, 4, v2')
            if it == its - 1 and nchunks % 512:
                e('v_cmp_gt_u32 vcc, s58, v2')
                e('s_and_saveexec_b64 s[60:61], vcc')
            e(f'buffer_load_dwordx4 v[{24+4*it}:{27+4*it}], v5, {srd(srcsrd)}, 0 offen')
        e('s_mov_b64 exec, -1')
        e('s_waitcnt vmcnt(0)')
        for it in range(its):
            if it == its - 1 and nchunks % 512:
                e('v_cmp_gt_u32 vcc, s58, v2')
                e('s_and_saveexec_b64 s[60:61], vcc')
            e(f'buffer_store_dwordx4 v[{24+4*it}:{27+4*it}], v{10+it}, {srd(SRD_WS)}, s{dstoff_reg} offen sc1')
        e('s_mov_b64 exec, -1')

    KB, VB, ONES = 0, 30720, 61760
    def p2(self):
        e = self.e
        sHP, sQB, sO0 = 54, 55, 56
        S0, OA, QF, KF, PF, VF = 64, 208, 224, 232, 8, 24
        e(f's_and_b32 s{sHP}, s{sWAVE}, 1')
        e(f's_lshr_b32 s{sQB}, s{sWAVE}, 1')
        e(f's_mul_i32 s{sO0}, s{sHP}, 3')
        e(f's_lshl_b32 s52, s{sWAVE}, 10')
        e(f's_add_u32 s52, s52, {self.ONES}')
        e('v_lshlrev_b32 v1, 4, v0')
        e('v_add_u32 v2, s52, v1')
        for r in range(4, 8): e(f'v_mov_b32 v{r}, 0x3f803f80')
        e('ds_write_b128 v2, v[4:7]')
        L = e.lab('nopoll')
        e(f's_cmp_lg_u32 s{sWAVE}, 4')
        e(f's_cbranch_scc1 {L}')
        e('v_min_u32 v2, 2, v0')
        e(f'v_sub_u32 v2, s{sG}, v2')
        e('v_max_i32 v2, 0, v2')
        e('v_lshlrev_b32 v2, 8, v2')
        if C_QKV: e(f'v_add_u32 v2, {C_QKV}, v2')
        e('v_mov_b32 v3, 15')
        self.poll(2, 3)
        e(f'{L}:')
        e('s_waitcnt lgkmcnt(0)')
        e('s_barrier')
        self.stamp(5)
        e('v_lshlrev_b32 v1, 4, v0')
        L = e.lab('nodma')
        e(f's_cmp_ge_u32 s{sWAVE}, 6')
        e(f's_cbranch_scc1 {L}')
        e(f's_lshl_b32 s52, s{sG}, 7')
        e(f's_lshl_b32 s53, s{sWAVE}, 6')
        e('s_add_u32 s52, s52, s53')
        e('s_sub_u32 s52, s52, 256')
        e('s_max_i32 s52, s52, 0')
        e('s_lshl_b32 s52, s52, 4')
        e(f's_mul_i32 s53, s{sM}, {5*PLANE}')
        e('s_add_u32 s52, s52, s53')
        e(f's_add_u32 s52, s52, {QKVP + 80*PLANE}')
        e(f's_lshl_b32 s57, s{sWAVE}, 10')
        for p in range(5):
            e(f's_add_u32 m0, s57, {self.KB + p*6144}')
            e(f'buffer_load_dwordx4 v1, {srd(SRD_WS)}, s52 offen sc1 lds')
            e(f's_add_u32 s53, s52, {80*PLANE}')
            e(f's_add_u32 m0, s57, {self.VB + p*6208}')
            e(f'buffer_load_dwordx4 v1, {srd(SRD_WS)}, s53 offen sc1 lds')
            if p < 4: e(f's_add_u32 s52, s52, {PLANE}')
        e(f'{L}:')
        e('v_and_b32 v2, 31, v0')
        e('v_lshrrev_b32 v3, 5, v0')
        e('v_lshlrev_b32 v4, 4, v2')
        e('v_lshl_add_u32 v5, v3, 15, v4')
        e(f's_lshl_b32 s52, s{sG}, 7')
        e(f's_lshl_b32 s53, s{sQB}, 5')
        e('s_add_u32 s52, s52, s53')
        e('s_lshl_b32 s59, s52, 4')
        e(f's_mul_i32 s53, s{sM}, 5')
        e(f's_add_u32 s57, s53, s{sO0}')
        e('s_lshl_b32 s57, s57, 15')
        e('s_add_u32 s57, s57, s59')
        e(f's_add_u32 s57, s57, {QKVP}')
        e(f'buffer_load_dwordx4 v[{QF}:{QF+3}], v5, {srd(SRD_WS)}, s57 offen sc1')
        e('s_add_u32 s57, s53, 2')
        e('s_lshl_b32 s57, s57, 15')
        e('s_add_u32 s57, s57, s59')
        e(f's_add_u32 s57, s57, {QKVP}')
        e(f'buffer_load_dwordx4 v[{QF+4}:{QF+7}], v4, {srd(SRD_WS)}, s57 offen sc1')
        e(f's_lshl_b32 s52, s{sQB}, 9')
        e('v_add_u32 v6, s52, v4')
        e(f'v_add_u32 v7, s{sO0}, v3')
        e('v_mul_u32_u24 v7, 6144, v7')
        e('v_add_u32 v40, v7, v6')
        e(f'v_add_u32 v41, {2*6144}, v6')
        e('v_lshrrev_b32 v6, 4, v0')
        e('v_bfe_u32 v7, v0, 2, 2')
        e('v_and_b32 v8, 3, v0')
        e('v_lshl_add_u32 v9, v3, 2, v7')
        e('v_lshlrev_b32 v9, 4, v9')
        e('v_add_u32 v9, s52, v9')
        e('v_lshrrev_b32 v10, 1, v8')
        e(f'v_add_u32 v10, s{sO0}, v10')
        e('v_mul_u32_u24 v10, 6208, v10')
        e('v_and_b32 v11, 1, v8')
        e('v_lshl_add_u32 v10, v11, 3, v10')
        e(f'v_add_u32 v10, {self.VB}, v10')
        e(f's_lshl_b32 s53, s{sHP}, 3')
        e(f's_add_u32 s53, s53, {self.VB + 2*6208}')
        e(f's_xor_b32 s57, s{sHP}, 1')
        e('s_lshl_b32 s57, s57, 7')
        e(f's_add_u32 s57, s57, {self.ONES}')
        e('v_mov_b32 v11, s57')
        e('v_mov_b32 v12, s53')
        e('v_cmp_eq_u32 vcc, 0, v8')
        e('v_cndmask_b32 v11, v11, v12, vcc')
        e('v_and_b32 v12, 1, v6')
        e('v_cmp_eq_u32 vcc, 0, v12')
        e('v_cndmask_b32 v10, v11, v10, vcc')
        e('v_add_u32 v42, v10, v9')
        e('v_lshlrev_b32 v7, 2, v3')
        e('v_sub_u32 v43, v2, v7')
        e('s_waitcnt vmcnt(0)')
        e(f's_cmp_eq_u32 s{sHP}, 0')
        e('s_cselect_b32 s60, -1, 0')
        e('s_mov_b32 s61, 0')
        e('s_cselect_b32 s62, 0, -1')
        e('s_mov_b32 s63, 0')
        for d in range(4):
            mk = 60 if d < 2 else 62
            e(f'v_cndmask_b32 v{QF+4+d}, 0, v{QF+4+d}, s[{mk}:{mk+1}]')
        e('s_barrier')
        self.stamp(6)
        def kreads(t, st):
            return [f'ds_read_b128 v[{KF+8*st}:{KF+8*st+3}], v40 offset:{t*512}',
                    f'ds_read_b128 v[{KF+8*st+4}:{KF+8*st+7}], v41 offset:{t*512}']
        def vreads(t, st):
            return [f'ds_read_b64_tr_b16 v[{VF+8*st+4*u+2*s}:{VF+8*st+4*u+2*s+1}], v42 offset:{t*512+u*256+s*128}'
                    for u in range(2) for s in range(2)]
        e(f's_lshl_b32 s52, s{sG}, 2')
        e(f's_add_u32 s52, s52, s{sQB}')
        e('s_sub_i32 s52, 8, s52')
        e('s_mov_b32 s57, 0xf149f2ca')
        for r in kreads(0, 0): e(r)
        for t in range(9):
            st = t & 1
            if t < 8:
                for r in kreads(t + 1, st ^ 1): e(r)
                e('s_waitcnt lgkmcnt(2)')
            else:
                e('s_waitcnt lgkmcnt(0)')
            a = S0 + 16*t
            if t < 8:
                Li = e.lab('inv'); Lb = e.lab('invb')
                e(f's_cmp_gt_i32 s52, {t}')
                e(f's_cbranch_scc1 {Li}')
                self.tail.append([f'{Li}:'] + [f'v_mov_b32 v{a+r}, s57' for r in range(16)] + [f's_branch {Lb}'])
            e(f'v_mfma_f32_32x32x16_bf16 v[{a}:{a+15}], v[{KF+8*st}:{KF+8*st+3}], v[{QF}:{QF+3}], 0')
            e(f'v_mfma_f32_32x32x16_bf16 v[{a}:{a+15}], v[{KF+8*st+4}:{KF+8*st+7}], v[{QF+4}:{QF+7}], v[{a}:{a+15}]')
            if t < 8: e(f'{Lb}:')
            if 2 <= t:
                b = S0 + 16*(t - 1)
                if t == 2:
                    for q in range(4):
                        e(f'v_max3_f32 v{44+q}, v{b+4*q}, v{b+4*q+1}, v{b+4*q+2}')
                    for q in range(4):
                        e(f'v_max_f32 v{44+q}, v{44+q}, v{b+4*q+3}')
                else:
                    for q in range(4):
                        e(f'v_max3_f32 v{44+q}, v{b+4*q}, v{b+4*q+1}, v{44+q}')
                    for q in range(4):
                        e(f'v_max3_f32 v{44+q}, v{b+4*q+2}, v{b+4*q+3}, v{44+q}')
        for r in vreads(0, 0): e(r)
        e('v_mov_b32 v48, s57')
        for r0 in range(0, 16, 4):
            for q in range(4):
                r = r0 + q
                e(f'v_cmp_gt_i32 s[{60+2*q}:{61+2*q}], {8*(r>>2) + (r&3)}, v43')
            for q in range(4):
                r = r0 + q
                e(f'v_cndmask_b32 v{S0+r}, v48, v{S0+r}, s[{60+2*q}:{61+2*q}]')
                e(f'v_cndmask_b32 v{S0+128+r}, v{S0+128+r}, v48, s[{60+2*q}:{61+2*q}]')
        for b in (S0, S0 + 128):
            for q in range(4):
                e(f'v_max3_f32 v{44+q}, v{b+4*q}, v{b+4*q+1}, v{44+q}')
            for q in range(4):
                e(f'v_max3_f32 v{44+q}, v{b+4*q+2}, v{b+4*q+3}, v{44+q}')
        e('v_max3_f32 v44, v44, v45, v46')
        e('v_max_f32 v44, v44, v47')
        e('v_mov_b32 v45, v44')
        e('v_permlane32_swap_b32 v44, v45')
        e('v_max_f32 v44, v44, v45')
        e('v_sub_f32 v46, 0, v44')
        self.stamp(7)
        for t in range(9):
            st = t & 1
            a = S0 + 16*t
            if t < 8:
                for r in vreads(t + 1, st ^ 1): e(r)
            P = PF + 8*st
            for u in range(2):
                for p in range(4):
                    x = a + 8*u + 2*p
                    e(f'v_pk_add_f32 v[{x}:{x+1}], v[{x}:{x+1}], v[46:47] op_sel_hi:[1,0]')
                for p in range(8):
                    e(f'v_exp_f32 v{a+8*u+p}, v{a+8*u+p}')
                for p in range(4):
                    x = a + 8*u + 2*p
                    e(f'v_cvt_pk_bf16_f32 v{P+4*u+p}, v{x}, v{x+1}')
                if u == 0:
                    e(f's_waitcnt lgkmcnt({4 if t < 8 else 0})')
                c = '0' if (t == 0 and u == 0) else f'v[{OA}:{OA+15}]'
                e(f'v_mfma_f32_32x32x16_bf16 v[{OA}:{OA+15}], v[{VF+8*st+4*u}:{VF+8*st+4*u+3}], v[{P+4*u}:{P+4*u+3}], {c}')
        self.stamp(8)
        e(f'v_rcp_f32 v46, v{OA+12}')
        for p in range(6):
            e(f'v_pk_mul_f32 v[{OA+2*p}:{OA+2*p+1}], v[{OA+2*p}:{OA+2*p+1}], v[46:47] op_sel_hi:[1,0]')
        for p in range(6):
            e(f'v_cvt_pk_bf16_f32 v{48+p}, v{OA+2*p}, v{OA+2*p+1}')
        e('v_permlane32_swap_b32 v48, v50')
        e('v_permlane32_swap_b32 v49, v51')
        e(f's_mul_i32 s53, s{sM}, 5')
        e(f's_add_u32 s57, s53, s{sO0}')
        e('s_lshl_b32 s57, s57, 15')
        e('s_add_u32 s57, s57, s59')
        e(f's_add_u32 s57, s57, {OP}')
        e(f'buffer_store_dwordx4 v[48:51], v5, {srd(SRD_WS)}, s57 offen sc1')
        e('s_add_u32 s57, s53, 2')
        e('s_lshl_b32 s57, s57, 15')
        e('s_add_u32 s57, s57, s59')
        e(f's_lshl_b32 s53, s{sHP}, 3')
        e('s_add_u32 s57, s57, s53')
        e(f's_add_u32 s57, s57, {OP}')
        e('s_mov_b32 exec_hi, 0')
        e(f'buffer_store_dwordx2 v[52:53], v4, {srd(SRD_WS)}, s57 offen sc1')
        e('s_mov_b32 exec_hi, -1')
        e('s_waitcnt vmcnt(0)')
        self.stamp(9)
        e('s_barrier')
        L = e.lab('nosig')
        e(f's_cmp_lg_u32 s{sWAVE}, 4')
        e(f's_cbranch_scc1 {L}')
        e(f's_lshl_b32 s52, s{sG}, 8')
        e(f's_add_u32 s52, s52, {C_ATT}')
        self.signal(52)
        e(f'{L}:')

    SLOT80, NS80 = 18432, 8
    def g80_poll(self, down):
        e = self.e
        L = e.lab('nopoll')
        e(f's_cmp_lg_u32 s{sWAVE}, 4')
        e(f's_cbranch_scc1 {L}')
        e(f's_lshl_b32 s52, s{sG}, 8')
        e(f's_add_u32 s52, s52, {C_GU if down else C_ATT}')
        e('v_mov_b32 v2, s52')
        e(f'v_mov_b32 v3, {14 if down else 16}')
        e(f'v_mov_b32 v4, {C_REPD if down else C_AUX}')
        e(f'v_mov_b32 v5, {32 if down else 16}')
        e('v_cmp_eq_u32 vcc, 0, v0')
        e('v_cndmask_b32 v2, v4, v2, vcc')
        e('v_cndmask_b32 v3, v5, v3, vcc')
        self.poll(2, 3)
        e(f'{L}:')
        e('s_barrier')

    def g80_loader(self, down):
        e = self.e
        N = 27 if down else 10
        XP = HHP if down else OP
        WP = WDP if down else WOP
        sJ, sX, sW, sL, sS = 31, 54, 55, 56, 57
        e(f's_sub_u32 s{sJ}, s{sWAVE}, 4')
        e('v_lshlrev_b32 v10, 4, v0')
        e(f'v_add_u32 v11, {PLANE - 1024}, v10')
        e(f's_lshl_b32 s52, s{sJ}, 11')
        e('v_add_u32 v12, s52, v10')
        e(f's_lshl_b32 s52, s{sJ}, 9')
        e('s_add_u32 s52, s52, 8192')
        e('v_add_u32 v13, s52, v10')
        e(f's_lshl_b32 s{sX}, s{sJ}, 16')
        e(f's_lshl_b32 s52, s{sG}, 11')
        e(f's_add_u32 s{sX}, s{sX}, s52')
        e(f's_and_b32 s52, s{sM}, 1')
        e('s_lshl_b32 s52, s52, 10')
        e(f's_add_u32 s{sX}, s{sX}, s52')
        e(f's_add_u32 s{sX}, s{sX}, {XP}')
        e(f's_lshr_b32 s52, s{sM}, 1')
        e(f's_mul_i32 s{sW}, s52, {N*64*160}')
        e(f's_add_u32 s{sW}, s{sW}, {WP}')
        e(f's_mov_b32 s{sL}, 0')
        e(f's_lshl_b32 s58, s{sJ}, 11')
        e(f's_lshl_b32 s59, s{sJ}, 9')
        e('s_add_u32 s59, s59, 16384')
        e('s_add_u32 s60, s58, 8192')
        def issue():
            e(f's_add_u32 m0, s{sL}, s58')
            e(f'buffer_load_dwordx4 v10, {srd(SRD_WS)}, s{sX} offen sc1 lds')
            e(f'buffer_load_dwordx4 v11, {srd(SRD_WS)}, s{sX} offen offset:1024 sc1 lds')
            e(f's_add_u32 m0, s{sL}, s60')
            e(f'buffer_load_dwordx4 v12, {srd(SRD_WS)}, s{sW} offen sc1 lds')
            e(f'buffer_load_dwordx4 v12, {srd(SRD_WS)}, s{sW} offen offset:1024 sc1 lds')
            e(f's_add_u32 m0, s{sL}, s59')
            e('s_mov_b32 exec_hi, 0')
            e(f'buffer_load_dwordx4 v13, {srd(SRD_WS)}, s{sW} offen sc1 lds')
            e('s_mov_b32 exec_hi, -1')
            e(f's_add_u32 s{sX}, s{sX}, {8*PLANE}')
            e(f's_add_u32 s{sW}, s{sW}, 10240')
            e(f's_add_u32 s{sL}, s{sL}, {self.SLOT80}')
            e(f's_cmp_eq_u32 s{sL}, {self.SLOT80*self.NS80}')
            e(f's_cselect_b32 s{sL}, 0, s{sL}')
        self.g80_poll(down)
        self.stamp(10 if not down else 13)
        D = self.NS80 - 1
        Lp = e.lab('g80p')
        e(f's_mov_b32 s{sS}, 0')
        e(f'{Lp}:')
        issue()
        e(f's_add_u32 s{sS}, s{sS}, 1')
        e(f's_cmp_lt_u32 s{sS}, {D}')
        e(f's_cbranch_scc1 {Lp}')
        Lm = e.lab('g80m')
        e(f'{Lm}:')
        e(f's_waitcnt vmcnt({5*(D-1)})')
        e('s_barrier')
        issue()
        e(f's_add_u32 s{sS}, s{sS}, 1')
        e(f's_cmp_lt_u32 s{sS}, {N}')
        e(f's_cbranch_scc1 {Lm}')
        for q in range(D - 1, -1, -1):
            e(f's_waitcnt vmcnt({5*q})')
            e('s_barrier')
        e('s_barrier')

    def g80_consumer(self, down):
        e = self.e
        N = 27 if down else 10
        ACC, RES = 64, 88
        FR = [104, 124]
        AX, AW, BX, BW = 40, 41, 42, 43
        sTW, sWF, sSL, sS = 54, 55, 56, 57
        e(f's_and_b32 s{sTW}, s{sWAVE}, 1')
        e(f's_lshr_b32 s{sWF}, s{sWAVE}, 1')
        e('v_lshrrev_b32 v1, 4, v0')
        e('v_and_b32 v2, 15, v0')
        e(f's_lshl_b32 s52, s{sTW}, 5')
        e('v_add_u32 v3, s52, v2')
        e('v_lshlrev_b32 v4, 4, v3')
        e(f'v_lshl_add_u32 v{BX}, v1, 10, v4')
        e('v_lshrrev_b32 v5, 1, v1')
        e('v_lshlrev_b32 v5, 4, v5')
        e('v_and_b32 v6, 1, v1')
        e('v_lshl_add_u32 v5, v6, 2, v5')
        e('v_bfe_u32 v6, v0, 2, 2')
        e('v_add_u32 v5, v5, v6')
        e('v_mul_u32_u24 v5, 160, v5')
        e('v_and_b32 v6, 3, v0')
        e('v_lshl_add_u32 v5, v6, 3, v5')
        e(f's_lshl_b32 s52, s{sWF}, 6')
        e('s_add_u32 s52, s52, 8192')
        e(f'v_add_u32 v{BW}, s52, v5')
        e(f's_lshl_b32 s52, s{sG}, 7')
        e(f's_and_b32 s53, s{sM}, 1')
        e('s_lshl_b32 s53, s53, 6')
        e('s_add_u32 s58, s52, s53')
        e('v_add_u32 v44, s58, v3')
        e(f's_lshr_b32 s52, s{sM}, 1')
        e('s_mul_i32 s59, s52, 80')
        e(f's_lshl_b32 s53, s{sWF}, 5')
        e('s_add_u32 s59, s59, s53')
        if not down:
            e('v_mul_u32_u24 v45, 1280, v44')
            e('v_lshl_add_u32 v45, v1, 3, v45')
            e('s_lshl_b32 s52, s59, 1')
            for ftl in range(3):
                for tt in range(2):
                    r = RES + 4*ftl + 2*tt
                    e(f's_add_u32 s53, s52, {tt*16*1280}')
                    e(f'buffer_load_dwordx2 v[{r}:{r+1}], v45, {srd(SRD_X)}, s53 offen offset:{32*ftl}')
        for r in range(ACC, ACC + 24): e(f'v_mov_b32 v{r}, 0')
        self.g80_poll(down)
        self.stamp(10 if not down else 13)
        if down:
            e('v_lshrrev_b32 v5, 1, v1')
            e('v_lshlrev_b32 v5, 15, v5')
            e('v_lshl_add_u32 v5, v44, 4, v5')
            e('v_and_b32 v6, 1, v1')
            e('v_lshl_add_u32 v45, v6, 3, v5')
            e('s_lshl_b32 s52, s59, 12')
            e(f's_add_u32 s52, s52, {HP}')
            for ftl in range(3):
                for tt in range(2):
                    r = RES + 4*ftl + 2*tt
                    e(f's_add_u32 s53, s52, {2*ftl*PLANE}')
                    e(f'buffer_load_dwordx2 v[{r}:{r+1}], v45, {srd(SRD_WS)}, s53 offen offset:{256*tt} sc1')
        def reads(ks, st):
            f = FR[st]
            out = []
            for ftl in range(3):
                for h in range(2):
                    out.append(f'ds_read_b64_tr_b16 v[{f+8+4*ftl+2*h}:{f+9+4*ftl+2*h}], v{AW} offset:{ks*5120 + h*1280 + ftl*32}')
            for tt in range(2):
                out.append(f'ds_read_b128 v[{f+4*tt}:{f+4*tt+3}], v{AX} offset:{ks*4096 + tt*256}')
            return out
        def mfmas(st):
            f = FR[st]
            out = []
            for ftl in range(3):
                for tt in range(2):
                    a = ACC + 8*ftl + 4*tt
                    out.append(f'v_mfma_f32_16x16x32_bf16 v[{a}:{a+3}], v[{f+8+4*ftl}:{f+11+4*ftl}], v[{f+4*tt}:{f+4*tt+3}], v[{a}:{a+3}]')
            return out
        e(f's_mov_b32 s{sSL}, 0')
        e(f's_mov_b32 s{sS}, 0')
        e(f'v_mov_b32 v{AX}, v{BX}')
        e(f'v_mov_b32 v{AW}, v{BW}')
        e('s_barrier')
        for r in reads(0, 0): e(r)
        Lp = e.lab('g80c'); Ls = e.lab('g80nb')
        e(f'{Lp}:')
        e('s_waitcnt lgkmcnt(0)')
        rd = reads(1, 1); mf = mfmas(0)
        e(mf[0]); e(rd[0]); e(rd[1]); e(mf[1]); e(rd[2]); e(rd[3]); e(mf[2]); e(rd[4]); e(rd[5]); e(mf[3]); e(rd[6]); e(rd[7]); e(mf[4]); e(mf[5])
        e(f's_add_u32 s{sSL}, s{sSL}, {self.SLOT80}')
        e(f's_cmp_eq_u32 s{sSL}, {self.SLOT80*self.NS80}')
        e(f's_cselect_b32 s{sSL}, 0, s{sSL}')
        e(f's_add_u32 s{sS}, s{sS}, 1')
        e('s_waitcnt lgkmcnt(0)')
        e(f'v_add_u32 v{AX}, s{sSL}, v{BX}')
        e(f'v_add_u32 v{AW}, s{sSL}, v{BW}')
        e(f's_cmp_eq_u32 s{sS}, {N}')
        e(f's_cbranch_scc1 {Ls}')
        e('s_barrier')
        e(f'{Ls}:')
        rd = reads(0, 0); mf = mfmas(1)
        e(mf[0]); e(rd[0]); e(rd[1]); e(mf[1]); e(rd[2]); e(rd[3]); e(mf[2]); e(rd[4]); e(rd[5]); e(mf[3]); e(rd[6]); e(rd[7]); e(mf[4]); e(mf[5])
        e(f's_cmp_lt_u32 s{sS}, {N}')
        e(f's_cbranch_scc1 {Lp}')
        e('s_waitcnt vmcnt(0) lgkmcnt(0)')
        self.stamp(11 if not down else 14)
        for ftl in range(3):
            for tt in range(2):
                a = ACC + 8*ftl + 4*tt
                r = RES + 4*ftl + 2*tt
                for p in range(2):
                    e(f'v_lshlrev_b32 v2, 16, v{r+p}')
                    e(f'v_and_b32 v3, 0xffff0000, v{r+p}')
                    e(f'v_pk_add_f32 v[{a+2*p}:{a+2*p+1}], v[{a+2*p}:{a+2*p+1}], v[2:3]')
        if not down:
            for tt in range(2):
                e(f'v_mov_b32 v{48+2*tt}, 0'); e(f'v_mov_b32 v{49+2*tt}, 0')
                e(f'v_mov_b32 v{52+2*tt}, 0'); e(f'v_mov_b32 v{53+2*tt}, 0')
            def acc_stats(ftl):
                for tt in range(2):
                    a = ACC + 8*ftl + 4*tt
                    for p in range(2):
                        e(f'v_pk_add_f32 v[{48+2*tt}:{49+2*tt}], v[{48+2*tt}:{49+2*tt}], v[{a+2*p}:{a+2*p+1}]')
                        e(f'v_pk_fma_f32 v[{52+2*tt}:{53+2*tt}], v[{a+2*p}:{a+2*p+1}], v[{a+2*p}:{a+2*p+1}], v[{52+2*tt}:{53+2*tt}]')
            Lk = e.lab('skip0')
            e(f's_cmp_lg_u32 s{sWF}, 0')
            e(f's_cbranch_scc1 {Lk}')
            acc_stats(0)
            e(f'{Lk}:')
            acc_stats(1); acc_stats(2)
            e('v_add_f32 v56, v48, v49'); e('v_add_f32 v57, v52, v53')
            e('v_add_f32 v58, v50, v51'); e('v_add_f32 v59, v54, v55')
            for sw in ('v_permlane16_swap_b32', 'v_permlane32_swap_b32'):
                for r in range(4): e(f'v_mov_b32 v{60+r}, v{56+r}')
                for r in range(4): e(f'{sw} v{56+r}, v{60+r}')
                for r in range(4): e(f'v_add_f32 v{56+r}, v{56+r}, v{60+r}')
            e('v_and_b32 v2, 16, v0')
            e('v_cmp_eq_u32 vcc, 0, v2')
            e('v_cndmask_b32 v56, v58, v56, vcc')
            e('v_cndmask_b32 v57, v59, v57, vcc')
            e(f's_lshr_b32 s52, s{sM}, 1')
            e('s_lshl_b32 s52, s52, 1')
            e(f's_add_u32 s52, s52, s{sWF}')
            e('s_lshl_b32 s52, s52, 14')
            e(f's_lshl_b32 s53, s{sTW}, 5')
            e('s_add_u32 s53, s53, s58')
            e('s_lshl_b32 s53, s53, 3')
            e('s_add_u32 s52, s52, s53')
            e(f's_add_u32 s52, s52, {STATS2}')
            e('v_and_b32 v2, 31, v0')
            e('v_lshlrev_b32 v2, 3, v2')
            e('s_mov_b32 exec_hi, 0')
            e(f'buffer_store_dwordx2 v[56:57], v2, {srd(SRD_WS)}, s52 offen sc1')
            e('s_mov_b32 exec_hi, -1')
        e('v_and_b32 v2, 15, v0')
        e('v_bfe_u32 v3, v0, 4, 1')
        e('v_lshl_add_u32 v2, v3, 4, v2')
        e(f's_lshl_b32 s53, s{sTW}, 5')
        e('s_add_u32 s53, s53, s58')
        e('v_add_u32 v2, s53, v2')
        e('v_lshrrev_b32 v3, 5, v0')
        if not down:
            e('v_lshlrev_b32 v2, 4, v2')
            e('v_lshl_add_u32 v2, v3, 15, v2')
            e('s_lshl_b32 s52, s59, 12')
            e(f's_add_u32 s52, s52, {HP}')
        else:
            e('v_mul_u32_u24 v2, 1280, v2')
            e('v_lshl_add_u32 v2, v3, 4, v2')
            e('s_lshl_b32 s52, s59, 1')
        Lk = e.lab('skipst')
        for ftl in range(3):
            if ftl == 0:
                e(f's_cmp_lg_u32 s{sWF}, 0')
                e(f's_cbranch_scc1 {Lk}')
            o = 8 + 4*ftl
            for tt in range(2):
                a = ACC + 8*ftl + 4*tt
                for p in range(2):
                    e(f'v_cvt_pk_bf16_f32 v{o+2*tt+p}, v{a+2*p}, v{a+2*p+1}')
            e(f'v_permlane16_swap_b32 v{o}, v{o+2}')
            e(f'v_permlane16_swap_b32 v{o+1}, v{o+3}')
            if not down:
                e(f's_add_u32 s53, s52, {2*ftl*PLANE}')
                e(f'buffer_store_dwordx4 v[{o}:{o+3}], v2, {srd(SRD_WS)}, s53 offen sc1')
            else:
                e(f'buffer_store_dwordx4 v[{o}:{o+3}], v2, {srd(SRD_OUT)}, s52 offen offset:{32*ftl}')
            if ftl == 0: e(f'{Lk}:')
        e('s_waitcnt vmcnt(0)')
        self.stamp(12 if not down else 15)
        e('s_barrier')

    SLOTG = 49152
    LDS_ST2 = 147456
    LDS_CSG = 147456 + 1024
    LDS_CSU = 147456 + 1536
    def p4_loader(self):
        e = self.e
        sJ, sX, sW, sL, sS = 31, 54, 55, 56, 57
        e(f's_sub_u32 s{sJ}, s{sWAVE}, 4')
        self.mk_srd(SRD_WA, P_WG, 640 * 3456)
        self.mk_srd(SRD_WB, P_WU, 640 * 3456)
        e('v_lshlrev_b32 v10, 4, v0')
        e(f'v_add_u32 v11, {PLANE - 2048}, v10')
        e('v_lshrrev_b32 v2, 4, v0')
        e(f's_lshl_b32 s52, s{sJ}, 4')
        e('v_add_u32 v4, s52, v2')
        e('v_mul_u32_u24 v4, 3456, v4')
        e('v_and_b32 v5, 15, v0')
        e('v_lshlrev_b32 v6, 2, v2')
        e('v_xor_b32 v5, v5, v6')
        e('v_lshl_add_u32 v14, v5, 4, v4')
        for i in range(1, 4):
            e(f'v_add_u32 v{14+i}, {i*(4*3456-1024)}, v14')
        e(f's_lshl_b32 s{sX}, s{sJ}, 16')
        e(f's_lshl_b32 s52, s{sG}, 11')
        e(f's_add_u32 s{sX}, s{sX}, s52')
        e(f's_add_u32 s{sX}, s{sX}, {HP}')
        e(f's_lshl_b32 s{sW}, s{sM}, 8')
        e(f's_lshl_b32 s58, s{sJ}, 12')
        e(f's_mov_b32 s{sL}, s58')
        e(f's_add_u32 s59, s58, {3*self.SLOTG}')
        def issue_w():
            e(f's_add_u32 m0, s{sL}, 16384')
            for i in range(4):
                e(f'buffer_load_dwordx4 v{14+i}, {srd(SRD_WA)}, s{sW} offen offset:{i*1024} lds')
            e(f's_add_u32 m0, s{sL}, 32768')
            for i in range(4):
                e(f'buffer_load_dwordx4 v{14+i}, {srd(SRD_WB)}, s{sW} offen offset:{i*1024} lds')
        def issue_x():
            e(f's_mov_b32 m0, s{sL}')
            for i in range(4):
                e(f'buffer_load_dwordx4 v{10+(i>>1)}, {srd(SRD_WS)}, s{sX} offen offset:{i*1024} sc1 lds')
        def adv():
            e(f's_add_u32 s{sX}, s{sX}, {8*PLANE}')
            e(f's_add_u32 s{sW}, s{sW}, {64*3456}')
            e(f's_add_u32 s{sL}, s{sL}, {self.SLOTG}')
            e(f's_cmp_eq_u32 s{sL}, s59')
            e(f's_cselect_b32 s{sL}, s58, s{sL}')
        self.p4_poll()
        self.stamp(10)
        for s in range(2):
            issue_x(); issue_w(); adv()
        Lcs = e.lab('cs'); Ld = e.lab('sd')
        e(f's_cmp_ge_u32 s{sJ}, 2')
        e(f's_cbranch_scc1 {Lcs}')
        e(f's_lshl_b32 s52, s{sG}, 7')
        e(f's_lshl_b32 s53, s{sJ}, 6')
        e('s_add_u32 s52, s52, s53')
        e('s_lshl_b32 s52, s52, 3')
        e(f's_add_u32 s52, s52, {STATS2}')
        e('v_lshlrev_b32 v2, 3, v0')
        for q in range(16):
            e(f'buffer_load_dwordx2 v[{24+2*q}:{25+2*q}], v2, {srd(SRD_WS)}, s52 offen sc1')
            if q < 15: e('s_add_u32 s52, s52, 16384')
        e('s_waitcnt vmcnt(0)')
        for q in range(1, 16):
            e(f'v_pk_add_f32 v[24:25], v[24:25], v[{24+2*q}:{25+2*q}]')
        e('s_mov_b32 s52, 0x3acccccd')
        e('s_mov_b32 s53, 0x3727c5ac')
        e('v_mul_f32 v24, s52, v24')
        e('v_mul_f32 v25, s52, v25')
        e('v_fma_f32 v25, -v24, v24, v25')
        e('v_max_f32 v25, 0, v25')
        e('v_add_f32 v25, s53, v25')
        e('v_rcp_f32 v25, v25')
        e('v_sub_f32 v24, 0, v24')
        e(f's_lshl_b32 s52, s{sJ}, 9')
        e(f's_add_u32 s52, s52, {self.LDS_ST2}')
        e('v_add_u32 v2, s52, v2')
        e('ds_write_b64 v2, v[24:25]')
        e(f's_branch {Ld}')
        e(f'{Lcs}:')
        e(f's_sub_u32 s52, s{sJ}, 2')
        e('s_lshl_b32 s53, s52, 13')
        e(f's_lshl_b32 s60, s{sM}, 9')
        e('s_add_u32 s53, s53, s60')
        e(f's_add_u32 s53, s53, {CS_OFF}')
        e('v_lshlrev_b32 v2, 3, v0')
        e(f'buffer_load_dwordx2 v[24:25], v2, {srd(SRD_WS)}, s53 offen sc1')
        e('s_add_u32 s53, s53, 0x4000')
        e(f'buffer_load_dwordx2 v[26:27], v2, {srd(SRD_WS)}, s53 offen sc1')
        e('s_waitcnt vmcnt(0)')
        e('v_pk_add_f32 v[24:25], v[24:25], v[26:27]')
        e('s_lshl_b32 s52, s52, 9')
        e(f's_add_u32 s52, s52, {self.LDS_CSG}')
        e('v_add_u32 v2, s52, v2')
        e('ds_write_b64 v2, v[24:25]')
        e(f'{Ld}:')
        e('s_waitcnt lgkmcnt(0)')
        e(f's_mov_b32 s{sS}, 0')
        Lp = e.lab('p4l'); Lw0 = e.lab('w0'); Lw = e.lab('wd'); Lni = e.lab('ni')
        e(f'{Lp}:')
        e(f's_cmp_lt_u32 s{sS}, 9')
        e(f's_cbranch_scc0 {Lw0}')
        e('s_waitcnt vmcnt(12)')
        e(f's_branch {Lw}')
        e(f'{Lw0}:')
        e('s_waitcnt vmcnt(0)')
        e(f'{Lw}:')
        e('s_barrier')
        e(f's_cmp_lt_u32 s{sS}, 8')
        e(f's_cbranch_scc0 {Lni}')
        issue_x(); issue_w(); adv()
        e(f'{Lni}:')
        e(f's_add_u32 s{sS}, s{sS}, 1')
        e(f's_cmp_lt_u32 s{sS}, 10')
        e(f's_cbranch_scc1 {Lp}')
        e('s_barrier')

    def p4_poll(self):
        e = self.e
        L = e.lab('nopoll')
        e(f's_cmp_lg_u32 s{sWAVE}, 4')
        e(f's_cbranch_scc1 {L}')
        e(f's_lshl_b32 s52, s{sG}, 8')
        e(f's_add_u32 s52, s52, {C_WO}')
        e('v_mov_b32 v2, s52')
        e('v_mov_b32 v3, 16')
        self.poll(2, 3)
        e(f'{L}:')
        e('s_barrier')

    def p4_consumer(self):
        e = self.e
        AG, AU = 64, 128
        FR = [192, 216]
        AX, AW, BX, BW = 40, 41, 43, 44
        sWT, sWF, sSL, sS = 54, 55, 56, 57
        e(f's_and_b32 s{sWT}, s{sWAVE}, 1')
        e(f's_lshr_b32 s{sWF}, s{sWAVE}, 1')
        e('v_and_b32 v1, 31, v0')
        e(f's_lshl_b32 s52, s{sWT}, 6')
        e('v_add_u32 v2, s52, v1')
        e('v_lshlrev_b32 v2, 4, v2')
        e('v_lshrrev_b32 v4, 5, v0')
        e(f'v_lshl_add_u32 v{BX}, v4, 11, v2')
        e('v_lshrrev_b32 v1, 4, v0')
        e('v_bfe_u32 v2, v0, 2, 2')
        e('v_and_b32 v3, 3, v0')
        e('v_lshrrev_b32 v4, 1, v1')
        e('v_lshl_add_u32 v4, v4, 3, v2')
        e('v_lshlrev_b32 v4, 8, v4')
        e('v_add_u32 v4, 16384, v4')
        e('v_and_b32 v5, 1, v3')
        e('v_lshl_add_u32 v4, v5, 3, v4')
        e('v_and_b32 v5, 1, v1')
        e('v_lshlrev_b32 v5, 1, v5')
        e('v_lshrrev_b32 v6, 1, v3')
        e('v_add_u32 v5, v5, v6')
        e(f's_lshl_b32 s52, s{sWF}, 3')
        e('v_add_u32 v5, s52, v5')
        e('v_lshlrev_b32 v6, 2, v2')
        e('v_xor_b32 v5, v5, v6')
        e(f'v_lshl_add_u32 v{BW}, v5, 4, v4')
        e(f'v_xor_b32 v{BW+1}, 64, v{BW}')
        for r in range(AG, AG + 128): e(f'v_mov_b32 v{r}, 0')
        def reads(kk, st):
            f = FR[st]
            out = []
            for mat in range(2):
                for ft in range(2):
                    for h in range(2):
                        out.append(f'ds_read_b64_tr_b16 v[{f+8+8*mat+4*ft+2*h}:{f+9+8*mat+4*ft+2*h}], v{AW+ft} offset:{mat*16384 + kk*4096 + h*1024}')
            for tt in range(2):
                out.append(f'ds_read_b128 v[{f+4*tt}:{f+4*tt+3}], v{AX} offset:{kk*4096 + tt*512}')
            return out
        def mfmas(st):
            f = FR[st]
            out = []
            for mat in range(2):
                for ft in range(2):
                    for tt in range(2):
                        a = (AU if mat else AG) + 32*ft + 16*tt
                        w = f + 8 + 8*mat + 4*ft
                        out.append(f'v_mfma_f32_32x32x16_bf16 v[{a}:{a+15}], v[{w}:{w+3}], v[{f+4*tt}:{f+4*tt+3}], v[{a}:{a+15}]')
            return out
        e(f's_mov_b32 s{sSL}, 0')
        e(f's_mov_b32 s{sS}, 0')
        e(f'v_mov_b32 v{AX}, v{BX}')
        e(f'v_mov_b32 v{AW}, v{BW}')
        e(f'v_mov_b32 v{AW+1}, v{BW+1}')
        self.p4_poll()
        self.stamp(10)
        e('s_barrier')
        for r in reads(0, 0): e(r)
        Lp = e.lab('p4c'); Ls = e.lab('nb')
        e(f'{Lp}:')
        st = 0
        for kk in range(4):
            if kk == 3:
                e(f's_add_u32 s{sSL}, s{sSL}, {self.SLOTG}')
                e(f's_cmp_eq_u32 s{sSL}, {3*self.SLOTG}')
                e(f's_cselect_b32 s{sSL}, 0, s{sSL}')
                e(f's_add_u32 s{sS}, s{sS}, 1')
            e('s_waitcnt lgkmcnt(0)')
            if kk == 3:
                e(f'v_add_u32 v{AX}, s{sSL}, v{BX}')
                e(f'v_add_u32 v{AW}, s{sSL}, v{BW}')
                e(f'v_add_u32 v{AW+1}, s{sSL}, v{BW+1}')
                e(f's_cmp_eq_u32 s{sS}, 10')
                e(f's_cbranch_scc1 {Ls}')
                e('s_barrier')
                e(f'{Ls}:')
                rd = reads(0, st ^ 1)
            else:
                rd = reads(kk + 1, st ^ 1)
            mf = mfmas(st)
            e(mf[0]); e(rd[0]); e(rd[1]); e(mf[1]); e(rd[2]); e(rd[3]); e(mf[2]); e(rd[4]); e(rd[5]); e(mf[3]); e(rd[6]); e(rd[7])
            e(mf[4]); e(rd[8]); e(rd[9]); e(mf[5]); e(mf[6]); e(mf[7])
            st ^= 1
        e(f's_cmp_lt_u32 s{sS}, 10')
        e(f's_cbranch_scc1 {Lp}')
        e('s_waitcnt lgkmcnt(0)')
        self.stamp(11)
        e('v_lshrrev_b32 v1, 5, v0')
        e('v_lshlrev_b32 v2, 4, v1')
        e(f's_lshl_b32 s52, s{sWF}, 8')
        e(f's_add_u32 s52, s52, {self.LDS_CSG}')
        e('v_add_u32 v3, s52, v2')
        e('v_and_b32 v5, 31, v0')
        e(f's_lshl_b32 s52, s{sWT}, 6')
        e('v_add_u32 v6, s52, v5')
        e('v_lshlrev_b32 v6, 3, v6')
        e(f'v_add_u32 v6, {self.LDS_ST2}, v6')
        e('ds_read_b64 v[8:9], v6')
        e('ds_read_b64 v[10:11], v6 offset:256')
        e('v_lshlrev_b32 v7, 15, v1')
        e('v_lshl_add_u32 v7, v5, 4, v7')
        e(f's_lshl_b32 s53, s{sM}, 4')
        e(f's_lshl_b32 s58, s{sWF}, 3')
        e('s_add_u32 s58, s58, s53')
        e('s_lshl_b32 s58, s58, 15')
        e(f's_lshl_b32 s53, s{sG}, 7')
        e(f's_lshl_b32 s59, s{sWT}, 6')
        e('s_add_u32 s53, s53, s59')
        e('s_lshl_b32 s53, s53, 4')
        e(f's_add_u32 s53, s53, {HHP}')
        e('s_add_u32 s58, s58, s53')
        nst = 0
        for ft in range(2):
            for gq in range(4):
                e(f'ds_read_b128 v[{192+4*gq}:{195+4*gq}], v3 offset:{128*ft + 32*gq}')
                e(f'ds_read_b128 v[{208+4*gq}:{211+4*gq}], v3 offset:{512 + 128*ft + 32*gq}')
            e('s_waitcnt lgkmcnt(0)')
            for tt in range(2):
                st_ = 8 + 2*tt
                for gp in range(2):
                    o = 224 + 4*(nst & 3)
                    for h in range(2):
                        gq = 2*gp + h
                        ag = AG + 32*ft + 16*tt + 4*gq
                        au = AU + 32*ft + 16*tt + 4*gq
                        cg = 192 + 4*gq; cu = 208 + 4*gq
                        for p in range(2):
                            e(f'v_pk_fma_f32 v[{ag+2*p}:{ag+2*p+1}], v[{cg+2*p}:{cg+2*p+1}], v[{st_}:{st_+1}], v[{ag+2*p}:{ag+2*p+1}] op_sel_hi:[1,0,1]')
                            e(f'v_pk_fma_f32 v[{au+2*p}:{au+2*p+1}], v[{cu+2*p}:{cu+2*p+1}], v[{st_}:{st_+1}], v[{au+2*p}:{au+2*p+1}] op_sel_hi:[1,0,1]')
                        for p in range(2):
                            e(f'v_pk_mul_f32 v[{ag+2*p}:{ag+2*p+1}], v[{ag+2*p}:{ag+2*p+1}], v[{st_}:{st_+1}] op_sel:[0,1] op_sel_hi:[1,1]')
                        for p in range(2):
                            e(f'v_pk_mul_f32 v[{ag+2*p}:{ag+2*p+1}], v[{ag+2*p}:{ag+2*p+1}], v[{au+2*p}:{au+2*p+1}]')
                        for p in range(2):
                            e(f'v_cvt_pk_bf16_f32 v{o+2*h+p}, v{ag+2*p}, v{ag+2*p+1}')
                    e(f'v_permlane32_swap_b32 v{o}, v{o+2}')
                    e(f'v_permlane32_swap_b32 v{o+1}, v{o+3}')
                    e(f's_add_u32 s57, s58, {(4*ft + 2*gp)*PLANE + tt*512}')
                    e(f'buffer_store_dwordx4 v[{o}:{o+3}], v7, {srd(SRD_WS)}, s57 offen sc1')
                    nst += 1
        e('s_waitcnt vmcnt(0)')
        self.stamp(12)
        e('s_barrier')

    def p4_aux(self):
        e = self.e
        self.mk_srd(SRD_WA, P_WD, 1728 * 1280)
        e(f's_lshl_b32 s52, s{sG}, 1')
        e(f's_add_u32 s52, s52, s{sM}')
        e('s_sub_u32 s52, s52, 14')
        e('s_lshr_b32 s54, s52, 2')
        e('s_and_b32 s55, s52, 3')
        e('s_mul_i32 s55, s55, 432')
        e('s_mul_i32 s56, s54, 276480')
        e('s_mul_i32 s59, s55, 160')
        e('s_add_u32 s56, s56, s59')
        e(f's_add_u32 s56, s56, {WDP}')
        self.repack_simple(SRD_WA, 56, 54, 55, 4320)
        e('s_waitcnt vmcnt(0)')
        e('s_barrier')
        self.sig_wave4(C_REPD, False)

    def sig_wave4(self, base, per_group=True):
        e = self.e
        L = e.lab('nosig')
        e(f's_cmp_lg_u32 s{sWAVE}, 4')
        e(f's_cbranch_scc1 {L}')
        if per_group:
            e(f's_lshl_b32 s52, s{sG}, 8')
            e(f's_add_u32 s52, s52, {base}')
        else:
            e(f's_mov_b32 s52, {base}')
        self.signal(52)
        e(f'{L}:')

    def build(self):
        e = self.e
        self.entry()
        La = e.lab('p1aux'); Ll = e.lab('p1ld'); L2 = e.lab('p2')
        e(f's_cmp_eq_u32 s{sM}, 15')
        e(f's_cbranch_scc1 {La}')
        e(f's_cmp_ge_u32 s{sWAVE}, 4')
        e(f's_cbranch_scc1 {Ll}')
        self.init_counters()
        self.p1_consumer()
        e(f's_branch {L2}')
        e(f'{Ll}:')
        self.p1_loader()
        self.sig_wave4(C_QKV)
        e(f's_branch {L2}')
        e(f'{La}:')
        self.p1_aux()
        e(f'{L2}:')
        if self.stop <= 1: return self.end()
        self.p2()
        if self.stop <= 2: return self.end()
        Ll = e.lab('p3ld'); L4 = e.lab('p4')
        e(f's_cmp_ge_u32 s{sWAVE}, 4')
        e(f's_cbranch_scc1 {Ll}')
        self.g80_consumer(False)
        e(f's_branch {L4}')
        e(f'{Ll}:')
        self.g80_loader(False)
        self.sig_wave4(C_WO)
        e(f'{L4}:')
        if self.stop <= 3: return self.end()
        La = e.lab('p4aux'); Ll = e.lab('p4ld'); L5 = e.lab('p5')
        e(f's_cmp_ge_u32 s{sM}, 14')
        e(f's_cbranch_scc1 {La}')
        e(f's_cmp_ge_u32 s{sWAVE}, 4')
        e(f's_cbranch_scc1 {Ll}')
        self.p4_consumer()
        e(f's_branch {L5}')
        e(f'{Ll}:')
        self.p4_loader()
        self.sig_wave4(C_GU)
        e(f's_branch {L5}')
        e(f'{La}:')
        self.p4_aux()
        e(f'{L5}:')
        if self.stop <= 4: return self.end()
        Ll = e.lab('p5ld'); L6 = e.lab('p6')
        e(f's_cmp_ge_u32 s{sWAVE}, 4')
        e(f's_cbranch_scc1 {Ll}')
        self.g80_consumer(True)
        e(f's_branch {L6}')
        e(f'{Ll}:')
        self.g80_loader(True)
        e(f'{L6}:')
        self.end()

    def end(self):
        e = self.e
        self.stamps_out()
        e('Lend:')
        e('s_endpgm')
        for blk in self.tail:
            for l in blk: e(l)

    def text(self):
        k = NAME + '_kernel'
        self.build()
        lines, nops = fix_hazards(self.e.lines)
        hdr = open('cdna_kernels/' + NAME + '.s.ref').read().split('\n')
        cm = [l for l in hdr if l.startswith(';') and 'offset' in l or l.startswith('; Kernarg')]
        out = cm + ['; @launch grid=(256,1,1) block=(512,1,1) lds=163840',
                    '.amdgcn_target "amdgcn-amd-amdhsa--gfx950"', '.text',
                    f'.globl {k}', '.p2align 8', f'.type {k},@function', f'{k}:']
        out += lines
        out.append(rodata([descriptor(k, 256, 102, 256)]))
        return '\n'.join(out) + '\n', nops

if __name__ == '__main__':
    import argparse
    ap = argparse.ArgumentParser()
    ap.add_argument('out')
    ap.add_argument('--stop', type=int, default=99)
    ap.add_argument('--stamps', action='store_true')
    a = ap.parse_args()
    g = Gen(a.stop, a.stamps)
    t, nops = g.text()
    open(a.out, 'w').write(t)
    print('written', a.out, 'lines', t.count('\n'), 'nops', nops)
```
